```python
import torch

def _softmax(x, axis=-1):
    return torch.softmax(x, dim=axis)
def _gelu(x):
    return torch.nn.functional.gelu(x, approximate="tanh")
def _silu(x):
    return torch.nn.functional.silu(x)
def _sigmoid(x):
    return torch.sigmoid(x)
def _layernorm(x, axis=-1, eps=1e-5):
    m = x.mean(dim=axis, keepdim=True)
    v = x.var(dim=axis, keepdim=True, unbiased=False)
    return (x - m) / torch.sqrt(v + eps)
def _scatter_add(tgt, idx, src, axis=0):
    return tgt.clone().index_add_(axis, idx, src)
def _segment_sum(src, seg, n):
    out = torch.zeros((n,) + src.shape[1:], dtype=src.dtype)
    return out.index_add_(0, seg, src)
def _pad(x, pw):
    flat = tuple(v for pair in reversed(pw) for v in pair)
    return torch.nn.functional.pad(x, flat)

kernel_name = 'parallel_sum__ssm_conv_s4__swiglu_ffn__prompt'

def setup_inputs():

    _w = (lambda a: (lambda t: t.to(torch.bfloat16) if t.is_floating_point() else t)(torch.as_tensor(a)))
    def _A_setup():
        B, L, D, N = 1, 2048, 512, 128
        A_re = -(lambda _x: torch.exp(torch.as_tensor(_x)))((lambda *s: torch.randn(*s, dtype=torch.bfloat16) * 3.2)(D, N))
        A_im = torch.pi * (lambda *s: torch.randn(*s, dtype=torch.bfloat16) * 0.1)(D, N)
        B_re = (lambda *s: torch.randn(*s, dtype=torch.bfloat16) * 0.4)(D, N)
        B_im = (lambda *s: torch.randn(*s, dtype=torch.bfloat16) * 0.4)(D, N)
        C_re = (lambda *s: torch.randn(*s, dtype=torch.bfloat16) * 0.4)(D, N)
        C_im = (lambda *s: torch.randn(*s, dtype=torch.bfloat16) * 0.4)(D, N)
        log_dt = (lambda *s: torch.randn(*s, dtype=torch.bfloat16) * 0.1)(D) * 0.5 - 4.0
        Dskip = (lambda *s: torch.randn(*s, dtype=torch.bfloat16) * 0.2)(D)
        return {
            "u": _w((lambda *s: torch.randn(*s, dtype=torch.bfloat16) * 0.05)(B, L, D)),
            "A_re": _w(A_re),
            "A_im": _w(A_im),
            "B_re": _w(B_re),
            "B_im": _w(B_im),
            "C_re": _w(C_re),
            "C_im": _w(C_im),
            "log_dt": _w(log_dt),
            "Dskip": _w(Dskip),
        }
    _A_in = _A_setup()

    def _B_setup():
        B, S, D, F = 1, 2048, 512, 1376
        return {
            "x": _w((lambda *s: torch.randn(*s, dtype=torch.bfloat16) * 0.05)(B, S, D)),
            "w_gate": _w((lambda *s: torch.randn(*s, dtype=torch.bfloat16) * 0.05)(D, F)),
            "w_up": _w((lambda *s: torch.randn(*s, dtype=torch.bfloat16) * 0.05)(D, F)),
            "w_down": _w((lambda *s: torch.randn(*s, dtype=torch.bfloat16) * 0.05)(F, D)),
        }
    _B_in = _B_setup()

    return {
        "A_u": _A_in["u"],
        "A_A_re": _A_in["A_re"],
        "A_A_im": _A_in["A_im"],
        "A_B_re": _A_in["B_re"],
        "A_B_im": _A_in["B_im"],
        "A_C_re": _A_in["C_re"],
        "A_C_im": _A_in["C_im"],
        "A_log_dt": _A_in["log_dt"],
        "A_Dskip": _A_in["Dskip"],
        "B_x": _B_in["x"],
        "B_w_gate": _B_in["w_gate"],
        "B_w_up": _B_in["w_up"],
        "B_w_down": _B_in["w_down"],
    }

def reference(A_u, A_A_re, A_A_im, A_B_re, A_B_im, A_C_re, A_C_im, A_log_dt, A_Dskip, B_x, B_w_gate, B_w_up, B_w_down):
    def _A_ref(u, A_re, A_im, B_re, B_im, C_re, C_im, log_dt, Dskip):
        Bsz, L, D = u.shape
        dt = torch.exp(log_dt)[:, None]
        A = A_re + 1j * A_im
        Bc = B_re + 1j * B_im
        Cc = C_re + 1j * C_im
        logdA = dt * A
        dB = dt * Bc
        l = (lambda x, dt: x.to(dt))(torch.arange(L), A_re.dtype)
        P = torch.exp(logdA[:, :, None] * l[None, None, :])
        K = torch.einsum("dn,dnl,dn->dl", Cc, P, dB).real
        L2 = 2 * L
        Kp = _pad(K, ((0, 0), (0, L)))
        up = (lambda x, *d: x.permute(*d))(u, 0, 2, 1)
        up = _pad(up, ((0, 0), (0, 0), (0, L)))
        Kf = (lambda x, axes=(-2,-1): torch.fft.rfft2(x.float(), dim=axes))(Kp[:, None, :], axes=(-2, -1))
        Uf = (lambda x, axes=(-2,-1): torch.fft.rfft2(x.float(), dim=axes))(up[:, :, None, :], axes=(-2, -1))
        Yf = Uf * Kf[None, :, :, :]
        y = (lambda x, s, axes=(-2,-1): torch.fft.irfft2(x, s=s, dim=axes).to(torch.bfloat16))(Yf, (1, L2), axes=(-2, -1))[:, :, 0, :L]
        y = (lambda x, *d: x.permute(*d))(y, 0, 2, 1) + u * Dskip[None, None, :]
        return y

    def _B_ref(x, w_gate, w_up, w_down):
        g = _silu(x @ w_gate)
        u = x @ w_up
        return (g * u) @ w_down

    x = A_u
    xn = _layernorm(x, axis=-1)
    return x + _A_ref(xn, A_A_re, A_A_im, A_B_re, A_B_im, A_C_re, A_C_im, A_log_dt, A_Dskip) + _B_ref(xn, B_w_gate, B_w_up, B_w_down)
```

```python
class Asm:
    def __init__(self): self.L=[]
    def __call__(self, s, *a):
        for ln in s.strip("\n").split("\n"):
            ln=ln.strip()
            if ln: self.L.append("    "+ln)
    def label(self, l): self.L.append(l+":")
    def c(self, s): self.L.append("    ; "+s)
    def raw(self, s): self.L.append(s)
    def text(self): return "\n".join(self.L)+"\n"
def v(i,n=1): return "v%d"%i if n==1 else "v[%d:%d]"%(i,i+n-1)
def s(i,n=1): return "s%d"%i if n==1 else "s[%d:%d]"%(i,i+n-1)
import struct
def f32(x): return "0x%08x"%struct.unpack("<I",struct.pack("<f",x))[0]
def interleave(primary, fillers, per):
    out=[]; fi=0
    n=len(primary)
    for k,p in enumerate(primary):
        out.append(p)
        want=(len(fillers)*(k+1)+n-1)//n if per is None else min(len(fillers),per*(k+1))
        while fi<want: out.append(fillers[fi]); fi+=1
    out+=fillers[fi:]
    return out
```

```python
import math
from asmlib import *
from layout import *
from gen import *

FP=528
AFSZ=49*FP; BFSZ=16*FP; CHSZ=AFSZ+BFSZ
L_T=2*CHSZ
L_TILE=L_T+2*1344
assert L_TILE%16==0

def cmul(D,X,Y):
    return [f"v_pk_mul_f32 {v(D,2)}, {v(X,2)}, {v(Y,2)} op_sel_hi:[0,1]",
            f"v_pk_fma_f32 {v(D,2)}, {v(X,2)}, {v(Y,2)}, {v(D,2)} op_sel:[1,1,0] op_sel_hi:[1,0,1] neg_lo:[1,0,0]"]

def ids(a):
    a("s_and_b32 s4, s3, 7\n s_lshr_b32 s5, s3, 3")
    a("v_lshrrev_b32 v2, 6, v0\n v_and_b32 v1, 63, v0\n s_nop 0\n v_readfirstlane_b32 s6, v2\n s_nop 3")

def prep(a):
    a.c("---- PREP role: s2 in [256,512)")
    a("s_cmp_ge_u32 s2, 512\n s_cbranch_scc1 L_end2")
    a("s_sub_u32 s3, s2, 256")
    ids(a)
    a("s_lshr_b32 s7, s6, 1\n s_and_b32 s8, s6, 1")
    a("s_lshl_b32 s9, s4, 6\n s_lshl_b32 s3, s5, 1\n s_add_u32 s9, s9, s3\n s_add_u32 s9, s9, s7")
    a("s_lshl_b32 s3, s9, 8\n s_lshl_b32 s10, s8, 7\n s_add_u32 s3, s3, s10")
    a("v_lshlrev_b32 v2, 1, v1\n v_add_u32 v2, s3, v2")
    a("s_lshl_b32 s3, s9, 1\n v_mov_b32 v3, s3")
    for r in range(10,17): a(f"v_mov_b32 v{r}, 0")
    a("s_lshr_b32 s10, s4, 1\n s_lshl_b32 s10, s10, 9\n s_and_b32 s3, s4, 1\n s_lshl_b32 s3, s3, 8\n s_add_u32 s10, s10, s3")
    a("s_lshl_b32 s3, s5, 3\n s_add_u32 s10, s10, s3\n s_lshl_b32 s3, s6, 1\n s_add_u32 s10, s10, s3")
    a("s_lshl_b32 s3, s10, 10\n v_lshlrev_b32 v4, 4, v1\n v_add_u32 v4, s3, v4")
    a("s_and_b32 s11, s5, 15\n s_lshr_b32 s12, s5, 4")
    a("s_lshl_b32 s3, s11, 17\n s_lshl_b32 s13, s4, 7\n s_add_u32 s3, s3, s13\n s_lshl_b32 s13, s12, 6\n s_add_u32 s3, s3, s13")
    a("v_lshrrev_b32 v5, 2, v0\n v_lshlrev_b32 v5, 10, v5\n v_and_b32 v6, 3, v0\n v_lshl_add_u32 v5, v6, 4, v5\n v_add_u32 v5, s3, v5\n v_add_u32 v6, 0x10000, v5")
    a("s_waitcnt lgkmcnt(0)")
    for i,p in enumerate([P_ARE,P_AIM,P_BRE,P_BIM,P_CRE,P_CIM]):
        a(f"global_load_short_d16_hi v{10+i}, v2, s[{p}:{p+1}]")
    a(f"global_load_short_d16_hi v16, v3, s[{P_LDT}:{P_LDT+1}]")
    a(f"global_load_dwordx4 v[20:23], v4, s[{P_X}:{P_X+1}]")
    a(f"global_load_dwordx4 v[24:27], v4, s[{P_X}:{P_X+1}] offset:1024")
    srd(a,48,P_X,2097152)
    a(f"s_lshl_b32 s3, s6, 10\n s_add_u32 m0, s3, {L_TILE}\n s_nop 0\n buffer_load_dwordx4 v5, s[48:51], 0 offen lds")
    a(f"s_add_u32 m0, s3, {L_TILE+4096}\n s_nop 0\n buffer_load_dwordx4 v6, s[48:51], 0 offen lds")
    a("s_waitcnt vmcnt(4)")
    L2E_HI=struct.unpack("<f",struct.pack("<f",LOG2E))[0]; L2E_LO=LOG2E-L2E_HI
    a(f"s_mov_b32 s64, {f32(L2E_HI)}")
    a(f"v_mul_f32 v30, s64, v16\n v_fma_f32 v31, v16, s64, -v30\n v_fmac_f32 v31, {f32(L2E_LO)}, v16")
    a(f"v_exp_f32 v30, v30\n v_mul_f32 v31, {f32(math.log(2))}, v31\n v_fma_f32 v30, v30, v31, v30")
    bf16round(a,30,30)
    a("v_mul_f32 v10, v30, v10\n v_mul_f32 v11, v30, v11\n v_mul_f32 v12, v30, v12\n v_mul_f32 v13, v30, v13")
    a(f"v_mul_f32 v10, s64, v10\n v_mul_f32 v11, 0.15915494, v11")
    CB=32; E1=34; E32=36; E512=38; E2=40; E4=42; E8=44
    for i in cmul(CB,14,12): a(i)
    for L,E in [(1,E1),(32,E32),(512,E512)]:
        a(f"v_mul_f32 v46, {f32(L)}, v10\n v_mul_f32 v47, {f32(L)}, v11\n v_exp_f32 v46, v46\n v_fract_f32 v47, v47")
        a(f"v_cos_f32 v48, v47\n v_sin_f32 v49, v47\n s_nop 0\n v_mul_f32 v{E}, v46, v48\n v_mul_f32 v{E+1}, v46, v49")
    for i in cmul(E2,E1,E1)+cmul(E4,E2,E2)+cmul(E8,E4,E4): a(i)
    a(f"s_mul_i32 s14, s7, {CHSZ}\n s_lshl_b32 s3, s8, 8\n s_add_u32 s3, s3, s14\n v_lshlrev_b32 v8, 2, v1\n v_add_u32 v8, s3, v8")
    def pp(base,i): return base+2*(i&1)
    ch1=[]; R=50
    ch1.append((None,E32,None,'B',1))
    for j in range(2,16): ch1.append((pp(R,j), E32 if j==2 else pp(R,j-1), E32,'B',j))
    ch2=[(None,CB,None,'A',0)]; R=54
    for k in range(1,16): ch2.append((pp(R,k), CB if k==1 else pp(R,k-1), E2,'A',2*k))
    ch3=[]; R=58
    for k in range(16): ch3.append((pp(R,k), CB if k==0 else pp(R,k-1), E1 if k==0 else E2,'A',2*k+1))
    G5=62; G10=64; G15=66; R=68
    ch4=[(G5,CB,E512,'A',32)]
    for b in range(1,8): ch4.append((pp(R,b), G5 if b==1 else pp(R,b-1), E4,'A',32+b))
    ch4.append((G10,G5,E512,'A',40))
    for b in range(1,4): ch4.append((pp(R,b), G10 if b==1 else pp(R,b-1), E8,'A',40+b))
    ch4.append((G15,G10,E512,'A',44))
    for b in range(1,4): ch4.append((pp(R,b), G15 if b==1 else pp(R,b-1), E8,'A',44+b))
    ch4.append((pp(R,0),G15,E512,'A',48))
    a(f"v_mov_b32 v72, 0x3f80\n ds_write_b32 v8, v72 offset:{AFSZ}")
    chains=[ch1,ch2,ch3,ch4]
    for rd in range(max(len(c) for c in chains)):
        st=[c[rd] for c in chains if rd<len(c)]
        ops=[cmul(d,x,y) if d is not None else None for (d,x,y,k,row) in st]
        for o in ops:
            if o: a(o[0])
        for o in ops:
            if o: a(o[1])
        for i,(d,x,y,k,row) in enumerate(st):
            src=d if d is not None else x
            neg="-" if k=='A' else ""
            a(f"v_cvt_pk_bf16_f32 v{72+i}, v{src}, {neg}v{src+1}")
        for i,(d,x,y,k,row) in enumerate(st):
            a(f"ds_write_b32 v8, v{72+i} offset:{row*FP+(AFSZ if k=='B' else 0)}")
    a("s_waitcnt vmcnt(2)\n s_mov_b32 s65, 0x3f803f80\n v_mov_b32 v28, 0\n v_mov_b32 v29, 0")
    for i in range(4): a(f"v_dot2c_f32_bf16 v28, s65, v{20+i}\n v_dot2c_f32_bf16 v29, s65, v{24+i}")
    def reduce2(r0,r1,sd0,sd1):
        a("s_nop 3")
        for m in ["row_shr:1 row_mask:0xf bank_mask:0xf bound_ctrl:0","row_shr:2 row_mask:0xf bank_mask:0xf bound_ctrl:0","row_shr:4 row_mask:0xf bank_mask:0xf bound_ctrl:0","row_shr:8 row_mask:0xf bank_mask:0xf bound_ctrl:0","row_bcast:15 row_mask:0xa bank_mask:0xf","row_bcast:31 row_mask:0xc bank_mask:0xf"]:
            a(f"v_add_f32_dpp v{r0}, v{r0}, v{r0} {m}\n v_add_f32_dpp v{r1}, v{r1}, v{r1} {m}\n s_nop 0")
        a(f"v_mul_f32 v{r0}, {f32(1/512)}, v{r0}\n v_mul_f32 v{r1}, {f32(1/512)}, v{r1}\n s_nop 0")
        a(f"v_readlane_b32 s{sd0}, v{r0}, 63\n v_readlane_b32 s{sd1}, v{r1}, 63\n s_nop 1")
    reduce2(28,29,66,67)
    for rr,(X,sm,acc) in enumerate([(20,66,28),(24,67,29)]):
        U=80+8*rr
        for i in range(4):
            a(f"v_lshlrev_b32 v{U+2*i}, 16, v{X+i}\n v_and_b32 v{U+2*i+1}, 0xffff0000, v{X+i}")
        for i in range(8): a(f"v_subrev_f32 v{U+i}, s{sm}, v{U+i}")
        a(f"v_mul_f32 v{acc}, v{U}, v{U}")
        for i in range(1,8): a(f"v_fmac_f32 v{acc}, v{U+i}, v{U+i}")
    reduce2(28,29,68,69)
    a("v_cmp_eq_u32 vcc, 0, v1\n v_mov_b32 v28, s67\n v_mov_b32 v29, s69\n v_mov_b32 v80, s66\n v_mov_b32 v81, s68")
    a("v_cndmask_b32 v28, v28, v80, vcc\n v_cndmask_b32 v29, v29, v81, vcc")
    bf16round(a,28,28); bf16round(a,29,29)
    a(f"v_add_f32 v29, {f32(1e-5)}, v29"); bf16round(a,29,29)
    a("v_sqrt_f32 v29, v29\n s_nop 0"); bf16round(a,29,29)
    a("v_rcp_f32 v29, v29")
    a(f"s_add_u32 s56, s{P_WS}, {WS_ST}\n s_addc_u32 s57, s{P_WS+1}, 0")
    a("s_lshl_b32 s3, s10, 3\n v_lshlrev_b32 v80, 3, v1\n v_add_u32 v80, s3, v80")
    a("v_cmp_gt_u32 vcc, 2, v1\n s_and_saveexec_b64 s[58:59], vcc\n global_store_dwordx2 v80, v[28:29], s[56:57]\n s_mov_b64 exec, s[58:59]")
    a("s_waitcnt vmcnt(1) lgkmcnt(0)\n s_barrier")
    a(f"v_bfe_u32 v80, v1, 2, 2\n v_lshrrev_b32 v81, 5, v1\n v_lshl_add_u32 v80, v81, 3, v80\n s_lshl_b32 s3, s6, 5\n v_add_u32 v80, s3, v80\n v_lshlrev_b32 v80, 6, v80")
    a(f"v_bfe_u32 v82, v1, 4, 1\n v_lshl_add_u32 v80, v82, 5, v80\n v_and_b32 v83, 3, v1\n v_lshl_add_u32 v80, v83, 3, v80\n v_add_u32 v80, {L_TILE}, v80")
    for j in range(2):
        a(f"ds_read_b64_tr_b16 v[{84+4*j}:{85+4*j}], v80 offset:{1024*j}\n ds_read_b64_tr_b16 v[{86+4*j}:{87+4*j}], v80 offset:{1024*j+256}")
    a(f"v_and_b32 v92, 15, v1\n v_lshrrev_b32 v93, 4, v1\n v_mul_u32_u24 v94, {FP}, v92\n v_lshl_add_u32 v94, v93, 4, v94\n v_add_u32 v94, s14, v94")
    a(f"s_mul_i32 s3, s8, {32*FP}\n v_add_u32 v95, s3, v94")
    a(f"v_add_u32 v96, {16*FP}, v94\n v_lshlrev_b32 v97, 4, v93\n s_add_u32 s3, s14, {48*FP}\n v_add_u32 v97, s3, v97")
    a("s_cmp_eq_u32 s8, 0\n s_cselect_b64 vcc, -1, 0\n s_nop 1\n v_cndmask_b32 v96, v97, v96, vcc")
    FB=100
    for ks in range(8):
        a(f"ds_read_b128 {v(FB+12*ks,4)}, v94 offset:{AFSZ+64*ks}\n ds_read_b128 {v(FB+12*ks+4,4)}, v95 offset:{64*ks}\n ds_read_b128 {v(FB+12*ks+8,4)}, v96 offset:{64*ks}")
        if ks==2:
            a(f"s_add_u32 s56, s{P_WS}, {WS_XT}\n s_addc_u32 s57, s{P_WS+1}, 0")
            a("s_lshl_b32 s3, s4, 6\n s_lshl_b32 s13, s12, 5\n s_add_u32 s3, s3, s13\n s_lshl_b32 s3, s3, 12\n s_lshl_b32 s13, s11, 8\n s_add_u32 s3, s3, s13\n s_lshl_b32 s13, s6, 6\n s_add_u32 s3, s3, s13")
            a("v_and_b32 v80, 31, v1\n v_lshlrev_b32 v80, 12, v80\n v_lshl_add_u32 v80, v81, 4, v80\n v_add_u32 v80, s3, v80")
            a("s_waitcnt lgkmcnt(9)")
            a("global_store_dwordx4 v80, v[84:87], s[56:57]\n global_store_dwordx4 v80, v[88:91], s[56:57] offset:32")
    D1=20; D2=24
    for ks in range(8):
        a(f"s_waitcnt lgkmcnt({min(15,3*(7-ks))})")
        c1="0" if ks==0 else v(D1,4); c2="0" if ks==0 else v(D2,4)
        a(f"v_mfma_f32_16x16x32_bf16 {v(D1,4)}, {v(FB+12*ks+4,4)}, {v(FB+12*ks,4)}, {c1}")
        a(f"v_mfma_f32_16x16x32_bf16 {v(D2,4)}, {v(FB+12*ks+8,4)}, {v(FB+12*ks,4)}, {c2}")
    a(f"s_mul_i32 s15, s7, 1344\n s_add_u32 s15, s15, {L_T}")
    a("v_lshlrev_b32 v80, 5, v92\n v_lshl_add_u32 v80, v93, 2, v80")
    a("s_nop 4")
    a("s_cmp_eq_u32 s8, 0\n s_cbranch_scc0 L_pT1")
    for T_,D in [(0,D1),(1,D2)]:
        a(f"v_cvt_pk_bf16_f32 v{28+4*T_}, v{D}, v{D+1}\n v_cvt_pk_bf16_f32 v{29+4*T_}, v{D+2}, v{D+3}\n v_cvt_pk_bf16_f32 v{30+4*T_}, v{D}, v{D+2}")
    a("v_lshlrev_b32 v81, 1, v80\n v_add_u32 v81, s15, v81\n v_add_u32 v82, s15, v80")
    a("v_cmp_gt_u32 vcc, 8, v92\n s_and_saveexec_b64 s[58:59], vcc")
    a("ds_write_b64 v81, v[28:29]\n ds_write_b64 v81, v[32:33] offset:32")
    a("s_andn2_b64 exec, s[58:59], exec")
    a("ds_write_b32 v82, v30 offset:256\n ds_write_b32 v82, v34 offset:272")
    a("s_mov_b64 exec, s[58:59]\n s_branch L_pT2")
    a.label("L_pT1")
    a(f"v_cvt_pk_bf16_f32 v28, v{D1}, v{D1+1}\n v_cvt_pk_bf16_f32 v29, v{D1+2}, v{D1+3}\n v_cvt_pk_bf16_f32 v30, v{D2}, v{D2}")
    a("v_lshlrev_b32 v81, 3, v92\n v_lshl_add_u32 v81, v93, 2, v81\n v_add_u32 v81, 384, v81")
    a("v_lshlrev_b32 v82, 2, v92\n v_lshl_add_u32 v82, v93, 6, v82\n v_add_u32 v82, 384, v82")
    a("v_cmp_gt_u32 vcc, 2, v93\n s_nop 1\n v_cndmask_b32 v81, v82, v81, vcc\n v_lshlrev_b32 v81, 1, v81\n v_add_u32 v81, s15, v81")
    a("ds_write_b64 v81, v[28:29]\n v_mov_b32 v82, s15")
    a("v_cmp_eq_u32 vcc, 0, v1\n s_and_saveexec_b64 s[58:59], vcc\n ds_write_b16 v82, v30 offset:1280\n s_mov_b64 exec, s[58:59]")
    a.label("L_pT2")
    a(f"s_mul_i32 s3, s9, {RK_PITCH}\n s_add_u32 s56, s{P_WS}, s3\n s_addc_u32 s57, s{P_WS+1}, 0\n s_add_u32 s56, s56, {WS_RK}\n s_addc_u32 s57, s57, 0")
    a("s_mov_b32 s66, 0x01000100\n s_mov_b32 s67, 0x03020302\n s_mov_b32 s68, 0x01000302\n s_mov_b32 s69, 0x03020504\n s_mov_b32 s70, 0x03020100")
    a("v_lshlrev_b32 v80, 2, v1\n v_add_u32 v80, s15, v80")
    a("s_waitcnt lgkmcnt(0)\n s_barrier")
    a("s_cmp_eq_u32 s8, 0\n s_cbranch_scc0 L_pE1")
    a("ds_read2_b32 v[20:21], v80 offset0:192 offset1:193")
    a("v_and_b32 v81, 31, v1\n v_lshlrev_b32 v82, 3, v81\n v_add_u32 v82, 512, v82\n v_lshlrev_b32 v83, 4, v81\n v_cmp_gt_u32 vcc, 32, v1\n s_nop 1\n v_cndmask_b32 v82, v83, v82, vcc\n v_add_u32 v82, s15, v82")
    a("ds_read2_b32 v[24:25], v82 offset0:0 offset1:1\n ds_read2_b32 v[26:27], v82 offset0:2 offset1:3")
    a("v_lshlrev_b32 v84, 4, v1\n v_sub_u32 v84, 3056, v84")
    a("v_lshlrev_b32 v85, 4, v81\n v_sub_u32 v85, 3568, v85\n v_add_u32 v86, 512, v85\n v_cndmask_b32 v85, v86, v85, vcc")
    a("s_waitcnt lgkmcnt(2)")
    a("v_perm_b32 v28, v21, v21, s66\n v_perm_b32 v29, v20, v20, s67\n v_perm_b32 v30, v20, v20, s68\n v_perm_b32 v31, v20, v20, s66")
    a("global_store_dwordx4 v84, v[28:31], s[56:57]")
    a("s_waitcnt lgkmcnt(0)")
    a("v_perm_b32 v32, v27, v27, s68\n v_perm_b32 v33, v26, v26, s68\n v_perm_b32 v34, v25, v25, s68\n v_perm_b32 v35, v24, v24, s68")
    a("s_and_saveexec_b64 s[58:59], vcc")
    a("v_perm_b32 v32, v26, v25, s69\n v_perm_b32 v33, v25, v25, s66\n v_perm_b32 v34, v25, v24, s69\n v_perm_b32 v35, v24, v24, s66")
    a("s_mov_b64 exec, s[58:59]")
    a("global_store_dwordx4 v85, v[32:35], s[56:57]")
    a("s_branch L_pE2")
    a.label("L_pE1")
    a("v_add_u32 v81, 1024, v80\n ds_read2_b32 v[20:21], v81 offset0:0 offset1:1")
    a("v_lshlrev_b32 v84, 5, v1\n v_sub_u32 v84, 2016, v84")
    a("v_mov_b32 v36, 0\n v_mov_b32 v37, 0\n v_mov_b32 v38, 0\n v_mov_b32 v39, 0\n v_lshlrev_b32 v85, 4, v1")
    a("v_add_u32 v85, 4096, v85\n v_cmp_gt_u32 vcc, 4, v1\n s_and_saveexec_b64 s[58:59], vcc\n global_store_dwordx4 v85, v[36:39], s[56:57]\n s_mov_b64 exec, s[58:59]")
    a("s_waitcnt lgkmcnt(0)")
    a("v_perm_b32 v28, v21, v21, s66\n v_perm_b32 v29, v21, v21, s66\n v_perm_b32 v30, v20, v20, s67\n v_perm_b32 v31, v20, v20, s67")
    a("v_perm_b32 v32, v20, v20, s67\n v_perm_b32 v33, v20, v20, s68\n v_perm_b32 v34, v20, v20, s66\n v_perm_b32 v35, v20, v20, s66")
    a("global_store_dwordx4 v84, v[28:31], s[56:57]\n global_store_dwordx4 v84, v[32:35], s[56:57] offset:16")
    a.label("L_pE2")
    a(f"s_add_u32 s56, s{P_WS}, {WS_FL}\n s_addc_u32 s57, s{P_WS+1}, 0")
    a("s_lshl_b32 s3, s4, 7\n s_lshl_b32 s13, s5, 2\n s_add_u32 s3, s3, s13\n v_mov_b32 v80, s3\n v_mov_b32 v81, 0")
    a("v_cmp_eq_u32 vcc, 0, v0\n s_and_saveexec_b64 s[58:59], vcc\n s_cbranch_execz L_pF\n global_store_dword v80, v81, s[56:57]")
    a.label("L_pF")
    a("s_mov_b64 exec, s[58:59]")
    a("s_mul_i32 s3, s5, 43\n s_lshl_b32 s3, s3, 10\n s_and_b32 s13, s4, 1\n s_lshl_b32 s13, s13, 9\n s_add_u32 s3, s3, s13")
    a("v_lshrrev_b32 v80, 2, v0\n v_lshlrev_b32 v80, 10, v80\n v_and_b32 v81, 3, v0\n v_lshl_add_u32 v80, v81, 7, v80\n v_add_u32 v80, s3, v80")
    a(f"v_cmp_gt_u32 vcc, 172, v0\n s_and_saveexec_b64 s[58:59], vcc\n s_cbranch_execz L_end2\n global_load_dword v81, v80, s[{P_WD}:{P_WD+1}]")
    a.label("L_end2")
    a("s_endpgm")


CHS=21248; KCOFF=4608; KCP=4160; L_RED=2*CHS
def conv(a, opts):
    a.c("---- CONV role: s2 in [0,256)")
    a("s_setprio 2")
    a("s_mov_b32 s3, s2")
    ids(a)
    a("s_lshr_b32 s7, s6, 1\n s_and_b32 s8, s6, 1")
    a("s_lshl_b32 s9, s4, 6\n s_lshl_b32 s3, s5, 1\n s_add_u32 s9, s9, s3\n s_add_u32 s9, s9, s7")
    a("v_and_b32 v5, 15, v1\n v_lshrrev_b32 v6, 4, v1")
    a("s_lshl_b32 s3, s9, 12\n s_lshl_b32 s10, s8, 11\n s_add_u32 s3, s3, s10")
    a("v_lshlrev_b32 v7, 5, v5\n v_lshl_add_u32 v7, v6, 3, v7\n v_lshlrev_b32 v8, 2, v7\n v_add_u32 v7, s3, v7")
    a("s_lshl_b32 s3, s8, 13\n v_add_u32 v8, s3, v8\n v_add_u32 v9, 0x1000, v8")
    a(f"s_mul_i32 s3, s9, {RK_PITCH}\n s_lshl_b32 s10, s8, 10\n s_add_u32 s3, s3, s10\n v_lshlrev_b32 v42, 4, v1\n v_add_u32 v42, s3, v42")
    a("s_lshl_b32 s3, s9, 1\n v_mov_b32 v43, s3\n v_mov_b32 v4, 0")
    a("s_waitcnt lgkmcnt(0)")
    for nm,off,reg in [("xt",WS_XT,48),("st",WS_ST,50),("rk",WS_RK,52),("zt",WS_ZT,54),("fl",WS_FL,56)]:
        a(f"s_add_u32 s{reg}, s{P_WS}, {off}\n s_addc_u32 s{reg+1}, s{P_WS+1}, 0")
    XR=176; T1=184; ST=112; RR=144
    for e in range(2):
        a(f"global_load_dwordx4 {v(RR+12*e,4)}, v42, s[52:53] offset:{2048*e}\n global_load_dwordx4 {v(RR+12*e+4,4)}, v42, s[52:53] offset:{2048*e+4}\n global_load_dword v{RR+12*e+8}, v42, s[52:53] offset:{2048*e+20}")
    for jj in range(4):
        a(f"global_load_dwordx2 {v(XR+2*jj,2)}, v7, s[48:49] offset:{512*jj}")
        b=8 if jj<2 else 9
        a(f"global_load_dwordx4 {v(ST+8*jj,4)}, v{b}, s[50:51] offset:{2048*(jj&1)}\n global_load_dwordx4 {v(ST+8*jj+4,4)}, v{b}, s[50:51] offset:{2048*(jj&1)+16}")
    a(f"global_load_short_d16_hi v4, v43, s[{P_DSK}:{P_DSK+1}]")
    a(f"s_mul_i32 s14, s7, {CHS}")
    a("v_mov_b32 v44, 0\n v_mov_b32 v45, 0\n v_mov_b32 v46, 0\n v_mov_b32 v47, 0")
    a(f"v_lshlrev_b32 v10, 4, v1\n v_lshrrev_b32 v11, 2, v1\n v_mul_u32_u24 v11, {KCP}, v11\n v_and_b32 v12, 3, v1\n v_lshl_add_u32 v11, v12, 4, v11\n v_add_u32 v11, {KCOFF+4096}, v11")
    a("s_cmp_eq_u32 s8, 0\n s_cselect_b64 vcc, -1, 0\n s_cselect_b32 s3, 30, 16\n s_nop 0\n v_cndmask_b32 v10, v11, v10, vcc\n v_add_u32 v10, s14, v10")
    a("v_cmp_gt_u32 vcc, s3, v1\n s_and_saveexec_b64 s[58:59], vcc\n ds_write_b128 v10, v[44:47]\n s_mov_b64 exec, s[58:59]")
    a(f"s_lshl_b32 s3, s8, 10\n s_add_u32 s3, s3, s14\n s_add_u32 s3, s3, {KCOFF}\n v_lshlrev_b32 v10, 4, v1\n v_add_u32 v10, s3, v10")
    a("v_lshlrev_b32 v11, 5, v5\n v_lshl_add_u32 v11, v6, 3, v11\n s_lshl_b32 s3, s8, 11\n s_add_u32 s3, s3, s14\n s_add_u32 s3, s3, 480\n v_add_u32 v11, s3, v11")
    a(f"v_sub_u32 v12, 3, v5\n v_and_b32 v12, 3, v12\n v_mul_u32_u24 v2, {KCP-2}, v12\n v_lshlrev_b32 v13, 3, v6\n v_sub_u32 v13, v13, v5\n v_add_u32 v13, 239, v13\n v_lshl_add_u32 v2, v13, 1, v2")
    a(f"s_lshl_b32 s3, s8, 6\n s_sub_u32 s3, s14, s3\n s_add_u32 s10, s3, {KCOFF}\n v_add_u32 v2, s10, v2")
    a("v_lshlrev_b32 v3, 5, v5\n v_lshl_add_u32 v3, v6, 4, v3\n s_add_u32 s3, s3, 448\n v_add_u32 v3, s3, v3")
    for e in range(2):
        A=RR+12*e; B=A+4; C=A+8; O=48+8*e
        a(f"s_waitcnt vmcnt({13+3*(1-e)})")
        a(f"ds_write_b128 v10, {v(A,4)} offset:{2048*e}\n ds_write_b128 v10, {v(B,4)} offset:{2048*e+2*KCP}")
        a(f"v_alignbit_b32 v{O}, v{A+1}, v{A}, 16\n v_alignbit_b32 v{O+1}, v{A+2}, v{A+1}, 16\n v_alignbit_b32 v{O+2}, v{A+3}, v{A+2}, 16\n v_alignbit_b32 v{O+3}, v{B+3}, v{A+3}, 16")
        a(f"v_mov_b32 v{O+4}, v{O+1}\n v_mov_b32 v{O+5}, v{O+2}\n v_mov_b32 v{O+6}, v{O+3}\n v_alignbit_b32 v{O+7}, v{C}, v{B+3}, 16")
        a(f"ds_write_b128 v10, {v(O,4)} offset:{2048*e+KCP}\n ds_write_b128 v10, {v(O+4,4)} offset:{2048*e+3*KCP}")
    for jj in range(4):
        S=ST+8*jj; U=64+8*jj; X=XR+2*jj
        a(f"s_waitcnt vmcnt({1+3*(3-jj)})")
        def unpack(dst,src):
            a(f"v_lshlrev_b32 v{dst}, 16, v{src}\n v_and_b32 v{dst+1}, 0xffff0000, v{src}\n v_lshlrev_b32 v{dst+2}, 16, v{src+1}\n v_and_b32 v{dst+3}, 0xffff0000, v{src+1}")
        unpack(U,X)
        for i in range(4): a(f"v_sub_f32 v{U+i}, v{U+i}, v{S+2*i}")
        a(f"v_cvt_pk_bf16_f32 v{U+4}, v{U}, v{U+1}\n v_cvt_pk_bf16_f32 v{U+5}, v{U+2}, v{U+3}")
        unpack(U,U+4)
        for i in range(4): a(f"v_mul_f32 v{U+i}, v{U+i}, v{S+2*i+1}")
        a(f"v_cvt_pk_bf16_f32 v{U+4}, v{U}, v{U+1}\n v_cvt_pk_bf16_f32 v{U+5}, v{U+2}, v{U+3}")
        a(f"ds_write_b64 v11, {v(U+4,2)} offset:{512*jj}")
    a("s_waitcnt vmcnt(0)")
    for jj in range(4):
        U=64+8*jj
        a(f"v_lshlrev_b32 v{U}, 16, v{U+4}\n v_and_b32 v{U+1}, 0xffff0000, v{U+4}\n v_lshlrev_b32 v{U+2}, 16, v{U+5}\n v_and_b32 v{U+3}, 0xffff0000, v{U+5}")
        for i in range(4): a(f"v_mul_f32 v{U+i}, v{U+i}, v4")
        a(f"v_cvt_pk_bf16_f32 v{T1+2*jj}, v{U}, v{U+1}\n v_cvt_pk_bf16_f32 v{T1+2*jj+1}, v{U+2}, v{U+3}")
    a("s_waitcnt lgkmcnt(0)\n s_barrier")
    ACC=10
    SETS=[(48,80),(112,144)]
    def reads(st):
        A,B=SETS[st]; o=[]
        for k in range(8):
            o.append(f"ds_read_b128 {v(B+4*k,4)}, v3 offset:{512*k}")
            o.append(f"ds_read_b64 {v(A+4*k,2)}, v2 offset:{512*(7-k)}")
            o.append(f"ds_read_b64 {v(A+4*k+2,2)}, v2 offset:{512*(7-k)+8}")
        return o
    def mf(st,first):
        A,B=SETS[st]; o=[]
        for p in range(8):
            for q in range(8-p):
                c="0" if (first and p==0) else v(ACC+4*(p+q),4)
                o.append(f"v_mfma_f32_16x16x32_bf16 {v(ACC+4*(p+q),4)}, {v(A+4*p,4)}, {v(B+4*q,4)}, {c}")
        return o
    for i in reads(0): a(i)
    for it in range(4):
        a("s_waitcnt lgkmcnt(0)")
        if it<3:
            a("v_subrev_u32 v2, 128, v2\n v_subrev_u32 v3, 128, v3")
            for i in interleave(mf(it&1,it==0), reads((it+1)&1), 1): a(i)
        else:
            for i in mf(it&1,False): a(i)
    a(f"s_lshl_b32 s3, s6, 12\n s_add_u32 s3, s3, {L_RED}\n v_lshlrev_b32 v2, 4, v1\n v_add_u32 v2, s3, v2\n v_xor_b32 v3, 0x1000, v2")
    assert L_RED%8192 in (0,) or True
    a("s_nop 4")
    Y=48; RV=64
    a("s_cmp_eq_u32 s8, 0\n s_cbranch_scc0 L_cR1")
    for k in range(4): a(f"ds_write_b128 v2, {v(ACC+16+4*k,4)} offset:{1024*k}")
    for k in range(16): a(f"v_mov_b32 v{Y+k}, v{ACC+k}")
    a("s_branch L_cR2")
    a.label("L_cR1")
    for k in range(4): a(f"ds_write_b128 v2, {v(ACC+4*k,4)} offset:{1024*k}")
    for k in range(16): a(f"v_mov_b32 v{Y+k}, v{ACC+16+k}")
    a.label("L_cR2")
    a("s_waitcnt lgkmcnt(0)\n s_barrier")
    for k in range(4): a(f"ds_read_b128 {v(RV+4*k,4)}, v3 offset:{1024*k}")
    for jj in range(4):
        y=Y+4*jj; U=80+8*jj
        a(f"s_waitcnt lgkmcnt({3-jj})")
        a(f"v_pk_add_f32 {v(y,2)}, {v(y,2)}, {v(RV+4*jj,2)}\n v_pk_add_f32 {v(y+2,2)}, {v(y+2,2)}, {v(RV+4*jj+2,2)}")
        def rnd():
            a(f"v_cvt_pk_bf16_f32 v{U+4}, v{y}, v{y+1}\n v_cvt_pk_bf16_f32 v{U+5}, v{y+2}, v{y+3}")
        def unp(dst,src):
            a(f"v_lshlrev_b32 v{dst}, 16, v{src}\n v_and_b32 v{dst+1}, 0xffff0000, v{src}\n v_lshlrev_b32 v{dst+2}, 16, v{src+1}\n v_and_b32 v{dst+3}, 0xffff0000, v{src+1}")
        rnd(); unp(y,U+4); unp(U,T1+2*jj)
        a(f"v_pk_add_f32 {v(y,2)}, {v(y,2)}, {v(U,2)}\n v_pk_add_f32 {v(y+2,2)}, {v(y+2,2)}, {v(U+2,2)}")
        rnd(); unp(y,U+4); unp(U,XR+2*jj)
        a(f"v_pk_add_f32 {v(y,2)}, {v(y,2)}, {v(U,2)}\n v_pk_add_f32 {v(y+2,2)}, {v(y+2,2)}, {v(U+2,2)}")
        rnd()
        a(f"global_store_dwordx2 v7, {v(U+4,2)}, s[54:55] offset:{512*jj} sc1")
    a("s_lshl_b32 s3, s4, 7\n s_lshl_b32 s13, s5, 2\n s_add_u32 s3, s3, s13\n v_mov_b32 v2, s3\n v_mov_b32 v3, 1")
    a("s_waitcnt vmcnt(0)\n s_barrier")
    a("v_cmp_eq_u32 vcc, 0, v0\n s_and_saveexec_b64 s[58:59], vcc\n s_cbranch_execz L_end3\n global_store_dword v2, v3, s[56:57] sc1")
    a.label("L_end3")
    a("s_endpgm")

NS=6; L_Z=49152
def gemm2(a, opts):
    a.c("---- GEMM2 role: s2 in [256,512)")
    a("s_cmp_ge_u32 s2, 512\n s_cbranch_scc1 L_end4")
    a("s_sub_u32 s3, s2, 256")
    ids(a)
    a("s_lshr_b32 s7, s4, 1\n s_lshl_b32 s7, s7, 3\n s_and_b32 s3, s5, 7\n s_add_u32 s7, s7, s3")
    a("s_and_b32 s8, s4, 1\n s_lshl_b32 s8, s8, 2\n s_lshr_b32 s3, s5, 3\n s_add_u32 s8, s8, s3")
    a("s_and_b32 s9, s6, 1\n s_lshr_b32 s10, s6, 1")
    a("s_mul_i32 s3, s10, 88064\n v_lshlrev_b32 v2, 4, v1\n v_add_u32 v3, s3, v2\n s_xor_b32 s11, s10, 1\n s_mul_i32 s3, s11, 88064\n v_add_u32 v4, s3, v2")
    a("s_mul_i32 s11, s7, 172\n s_add_u32 s11, s11, s6\n s_lshl_b32 s11, s11, 10")
    a("s_lshl_b32 s12, s6, 14")
    a("v_lshrrev_b32 v5, 3, v1\n v_lshlrev_b32 v5, 10, v5\n v_bfe_u32 v6, v1, 4, 1\n v_lshlrev_b32 v6, 2, v6\n v_and_b32 v7, 7, v1\n v_xor_b32 v6, v6, v7\n v_lshl_add_u32 v5, v6, 4, v5")
    a("s_lshl_b32 s3, s8, 7\n v_add_u32 v5, s3, v5\n v_add_u32 v6, 0x2000, v5")
    a(f"s_mul_i32 s13, s6, {NS*2048}")
    a("v_bfe_u32 v7, v1, 2, 2\n v_lshrrev_b32 v8, 5, v1\n v_lshl_add_u32 v8, v8, 2, v7\n v_lshlrev_b32 v8, 7, v8\n v_lshrrev_b32 v7, 1, v7\n v_xor_b32 v7, s9, v7\n v_lshl_add_u32 v8, v7, 6, v8")
    a("v_bfe_u32 v7, v1, 4, 1\n v_lshl_add_u32 v8, v7, 5, v8\n v_and_b32 v7, 3, v1\n v_lshl_add_u32 v8, v7, 3, v8\n v_add_u32 v8, s13, v8\n v_xor_b32 v9, 64, v8")
    a("s_waitcnt lgkmcnt(0)")
    srd(a,48,P_WS,64*86*1024, WS_HF if WS_HF else None)
    srd(a,52,P_WD,1409024)
    ACC=16; HB=80; WF=HB+8*NS
    NU=22
    def issue(k):
        sl=k%NS
        return [f"s_add_u32 m0, s13, {2048*sl}", "buffer_load_dwordx4 v5, s[52:55], s12 offen lds",
                f"s_add_u32 m0, s13, {2048*sl+1024}", "buffer_load_dwordx4 v6, s[52:55], s12 offen lds",
                f"buffer_load_dwordx4 {v(HB+8*sl,4)}, v3, s[48:51], s11 offen", f"buffer_load_dwordx4 {v(HB+8*sl+4,4)}, v4, s[48:51], s11 offen",
                "s_add_u32 s11, s11, 4096", "s_add_u32 s12, s12, 0x10000"]
    def trs(k):
        sl=k%NS; W=WF+8*(k&1)
        return [f"ds_read_b64_tr_b16 {v(W,2)}, v8 offset:{2048*sl}", f"ds_read_b64_tr_b16 {v(W+2,2)}, v8 offset:{2048*sl+1024}",
                f"ds_read_b64_tr_b16 {v(W+4,2)}, v9 offset:{2048*sl}", f"ds_read_b64_tr_b16 {v(W+6,2)}, v9 offset:{2048*sl+1024}"]
    for k in range(NS):
        for ins in issue(k):
            a(ins)
            if "m0" in ins: a("s_nop 0")
    a(f"s_waitcnt vmcnt({2+4*(NS-1)})")
    for i in trs(0): a(i)
    for k in range(NU):
        last_issued=min(NU-1,k+NS-1)
        if k+1<NU:
            a(f"s_waitcnt vmcnt({2+4*(last_issued-(k+1))}) lgkmcnt(0)")
            for i in trs(k+1): a(i)
        else:
            a("s_waitcnt vmcnt(0) lgkmcnt(0)")
        sl=k%NS; W=WF+8*(k&1); H=HB+8*sl
        for s_ in range(4):
            c="0" if k==0 else v(ACC+16*s_,16)
            a(f"v_mfma_f32_32x32x16_bf16 {v(ACC+16*s_,16)}, {v(W+4*(s_&1),4)}, {v(H+4*(s_>>1),4)}, {c}")
        if k+NS<NU:
            for ins in issue(k+NS):
                a(ins)
                if "m0" in ins: a("s_nop 0")
    a("v_add_u32 v3, s13, v2")
    for nm,off,reg in [("zt",WS_ZT,56),("fl",WS_FL,58)]:
        a(f"s_add_u32 s{reg}, s{P_WS}, {off}\n s_addc_u32 s{reg+1}, s{P_WS+1}, 0")
    a("v_and_b32 v4, 31, v1\n v_lshlrev_b32 v5, 2, v4\n s_lshl_b32 s3, s8, 7\n v_add_u32 v5, s3, v5")
    a("s_nop 7")
    for s_ in range(1,4):
        for q in range(4): a(f"ds_write_b128 v3, {v(ACC+16*s_+4*q,4)} offset:{4096*(s_-1)+1024*q}")
    if opts.get("flags",True):
        a("s_cmp_lg_u32 s6, 0\n s_cbranch_scc1 L_g2np\n s_mov_b32 s14, 0")
        a.label("L_g2poll")
        a("global_load_dword v6, v5, s[58:59] sc1\n s_add_u32 s14, s14, 1\n s_waitcnt vmcnt(0)\n v_cmp_ne_u32 vcc, 1, v6\n s_cmp_gt_u32 s14, 0x40000\n s_cbranch_scc1 L_g2np\n s_cbranch_vccz L_g2np\n s_sleep 2\n s_branch L_g2poll")
        a.label("L_g2np")
    a("s_lshl_b32 s3, s8, 6\n s_lshl_b32 s14, s9, 5\n s_add_u32 s3, s3, s14\n s_lshl_b32 s3, s3, 12\n s_lshl_b32 s14, s7, 7\n s_add_u32 s3, s3, s14\n s_lshl_b32 s14, s10, 6\n s_add_u32 s3, s3, s14")
    a("v_lshrrev_b32 v6, 2, v1\n v_lshlrev_b32 v6, 12, v6\n v_and_b32 v7, 3, v1\n v_lshl_add_u32 v6, v7, 4, v6\n v_add_u32 v6, s3, v6\n v_add_u32 v7, 0x10000, v6")
    a("s_waitcnt lgkmcnt(0)\n s_barrier")
    Z=80
    a(f"global_load_dwordx4 {v(Z,4)}, v6, s[56:57] sc1\n global_load_dwordx4 {v(Z+4,4)}, v7, s[56:57] sc1")
    RV=96
    for s_ in range(1,4):
        a(f"s_xor_b32 s3, s6, {s_}\n s_mul_i32 s3, s3, {NS*2048}\n v_add_u32 v{9+s_}, s3, v2")
        for q in range(4): a(f"ds_read_b128 {v(RV+16*(s_-1)+4*q,4)}, v{9+s_} offset:{4096*(s_-1)+1024*q}")
    a(f"s_lshl_b32 s3, s6, 11\n s_add_u32 s3, s3, {L_Z}\n v_add_u32 v3, s3, v2")
    a("v_bfe_u32 v8, v1, 2, 2\n v_lshrrev_b32 v9, 5, v1\n v_lshl_add_u32 v8, v9, 2, v8\n v_lshlrev_b32 v8, 6, v8\n v_bfe_u32 v13, v1, 4, 1\n v_lshl_add_u32 v8, v13, 5, v8\n v_and_b32 v13, 3, v1\n v_lshl_add_u32 v8, v13, 3, v8\n v_add_u32 v8, s3, v8")
    a("s_lshl_b32 s3, s7, 16\n s_lshl_b32 s14, s10, 15\n s_add_u32 s3, s3, s14\n s_lshl_b32 s14, s8, 7\n s_add_u32 s3, s3, s14\n s_lshl_b32 s14, s9, 6\n s_add_u32 s3, s3, s14")
    a("v_lshlrev_b32 v4, 10, v4\n v_lshl_add_u32 v4, v9, 3, v4\n v_add_u32 v4, s3, v4")
    for s_ in range(1,4):
        a(f"s_waitcnt lgkmcnt({4*(3-s_)})")
        for q in range(8): a(f"v_pk_add_f32 {v(ACC+2*q,2)}, {v(ACC+2*q,2)}, {v(RV+16*(s_-1)+2*q,2)}")
    a("s_waitcnt vmcnt(0)")
    a(f"ds_write_b128 v3, {v(Z,4)}\n ds_write_b128 v3, {v(Z+4,4)} offset:1024\n s_waitcnt lgkmcnt(0)")
    for q in range(4): a(f"ds_read_b64_tr_b16 {v(Z+8+2*q,2)}, v8 offset:{512*q}")
    for q in range(4):
        a(f"s_waitcnt lgkmcnt({3-q})")
        zz=Z+8+2*q; U=RV
        a(f"v_lshlrev_b32 v{U}, 16, v{zz}\n v_and_b32 v{U+1}, 0xffff0000, v{zz}\n v_lshlrev_b32 v{U+2}, 16, v{zz+1}\n v_and_b32 v{U+3}, 0xffff0000, v{zz+1}")
        a(f"v_pk_add_f32 {v(ACC+4*q,2)}, {v(ACC+4*q,2)}, {v(U,2)}\n v_pk_add_f32 {v(ACC+4*q+2,2)}, {v(ACC+4*q+2,2)}, {v(U+2,2)}")
        a(f"v_cvt_pk_bf16_f32 v{RV+4+2*q}, v{ACC+4*q}, v{ACC+4*q+1}\n v_cvt_pk_bf16_f32 v{RV+5+2*q}, v{ACC+4*q+2}, v{ACC+4*q+3}")
        a(f"global_store_dwordx2 v4, {v(RV+4+2*q,2)}, s[{P_OUT}:{P_OUT+1}] offset:{16*q}")
    a.label("L_end4")
    a("s_endpgm")

def k2(a, opts):
    a("s_cmp_ge_u32 s2, 256\n s_cbranch_scc1 L_gemm2")
    conv(a, opts)
    a.label("L_gemm2")
    gemm2(a, opts)
```

```python
import sys, math
from asmlib import *
from layout import *
NAME="parallel_sum__ssm_conv_s4__swiglu_ffn__prompt"
LOG2E=1.4426950408889634
P_X,P_ARE,P_AIM,P_BRE,P_BIM,P_CRE,P_CIM,P_LDT,P_DSK,P_BX,P_WG,P_WU,P_WD,P_OUT,P_DBG,P_WS=[16+2*i for i in range(16)]

def load_ptrs(a):
    a("s_load_dwordx16 s[16:31], s[0:1], 0")
    a("s_load_dwordx16 s[32:47], s[0:1], 64")

def srd(a, d, p, size, off=None):
    if off is None:
        a(f"s_mov_b32 s{d}, s{p}"); a(f"s_mov_b32 s{d+1}, s{p+1}")
    else:
        a(f"s_add_u32 s{d}, s{p}, {off}"); a(f"s_addc_u32 s{d+1}, s{p+1}, 0")
    a(f"s_mov_b32 s{d+2}, {size}"); a(f"s_mov_b32 s{d+3}, 0x00020000")

def bf16round(a, dst, src):
    a(f"v_cvt_pk_bf16_f32 v{dst}, v{src}, v{src}")
    a(f"v_and_b32 v{dst}, 0xffff0000, v{dst}")

STG=20480
def gemm1(a):
    ACC=64; SA=160; SB=180
    vXo=[2,3]; vWo=[4,5,6]; vX={(0,0):7,(0,1):8,(1,0):9,(1,1):10}
    vW={(k,u):11+3*k+u for k in range(2) for u in range(3)}
    SX=18; SXX=19; CS=[20,21,22]
    T=24
    a.c("---- GEMM1 role: s2 in [0,256)")
    a("s_and_b32 s3, s2, 7\n s_lshr_b32 s13, s2, 3")
    a("s_lshr_b32 s4, s3, 1\n s_lshl_b32 s4, s4, 2\n s_and_b32 s5, s13, 3\n s_add_u32 s4, s4, s5")
    a("s_and_b32 s5, s3, 1\n s_lshl_b32 s5, s5, 3\n s_lshr_b32 s13, s13, 2\n s_add_u32 s5, s5, s13")
    a("s_cmp_ge_u32 s5, 15\n s_cbranch_scc1 L_end1")
    a("v_lshrrev_b32 v2, 6, v0\n v_and_b32 v1, 63, v0\n s_nop 0\n v_readfirstlane_b32 s6, v2")
    a("s_mov_b32 s64, 0x3f803f80")
    a("s_nop 2")
    a("s_and_b32 s7, s6, 1\n s_lshr_b32 s8, s6, 1")
    a(f"v_lshrrev_b32 v{T}, 2, v1\n s_lshl_b32 s3, s6, 5\n v_add_u32 v{T}, s3, v{T}\n v_lshlrev_b32 v{T}, 10, v{T}")
    a(f"v_bfe_u32 v{T+1}, v1, 4, 2\n v_and_b32 v{T+2}, 3, v1\n v_xor_b32 v{T+1}, v{T+1}, v{T+2}")
    a(f"v_lshl_add_u32 v{vXo[0]}, v{T+1}, 4, v{T}\n v_add_u32 v{vXo[1]}, 0x4000, v{vXo[0]}")
    a(f"s_lshl_b32 s3, s8, 1\n v_xor_b32 v{T+2}, s3, v{T+2}")
    a(f"v_bfe_u32 v{T+3}, v1, 2, 2")
    a("s_mul_i32 s14, s5, 192\n s_lshl_b32 s15, s7, 4")
    a("s_movk_i32 s65, 2752")
    for e in range(3):
        a(f"v_lshrrev_b32 v{T}, 4, v1\n v_add_u32 v{T}, {4*e}, v{T}")
        a(f"v_mul_u32_u24 v{T+1}, 11, v{T}\n v_lshrrev_b32 v{T+1}, 5, v{T+1}")
        a(f"v_mul_u32_u24 v{T+4}, 3, v{T+1}\n v_sub_u32 v{T+4}, v{T}, v{T+4}")
        a(f"v_lshl_add_u32 v{T+1}, v{T+1}, 2, v{T+3}\n v_add_u32 v{T+1}, s15, v{T+1}")
        a(f"v_mul_lo_u32 v{T+1}, v{T+1}, s65")
        a(f"v_lshl_add_u32 v{T+1}, v{T+4}, 6, v{T+1}\n v_lshl_add_u32 v{T+1}, v{T+2}, 4, v{T+1}\n v_add_u32 v{vWo[e]}, s14, v{T+1}")
    a("s_waitcnt lgkmcnt(0)")
    a("s_lshl_b32 s3, s4, 17")
    srd(a,48,P_X,131072,"s3")
    a(f"s_cmp_eq_u32 s8, 0\n s_cselect_b32 s52, s{P_WG}, s{P_WU}\n s_cselect_b32 s53, s{P_WG+1}, s{P_WU+1}")
    a("s_mov_b32 s54, 1409024\n s_mov_b32 s55, 0x00020000")
    a("s_lshl_b32 s9, s6, 11")
    a("s_mul_i32 s10, s8, 6144\n s_mul_i32 s3, s7, 3072\n s_add_u32 s10, s10, s3\n s_add_u32 s10, s10, 8192")
    a("s_mov_b32 s11, 0\n s_mov_b32 s12, 0")
    def dma(b):
        o=[]
        for e in range(2):
            o.append(f"s_add_u32 m0, s9, {b*STG+1024*e}")
            o.append(f"buffer_load_dwordx4 v{vXo[e]}, s[48:51], s11 offen lds")
        for e in range(3):
            o.append(f"s_add_u32 m0, s10, {b*STG+1024*e}")
            o.append(f"buffer_load_dwordx4 v{vWo[e]}, s[52:55], s12 offen lds")
        o.append("s_add_u32 s11, s11, 64"); o.append("s_add_u32 s12, s12, 88064")
        return o
    for b in range(3):
        for ins in dma(b):
            a(ins)
            if "m0" in ins: a("s_nop 0")
    a(f"v_and_b32 v{T}, 31, v1\n v_lshrrev_b32 v{T+1}, 5, v1\n v_bfe_u32 v{T+2}, v1, 2, 2")
    a("s_lshl_b32 s3, s7, 1")
    a(f"v_add_u32 v{T+3}, s3, v{T+1}\n v_xor_b32 v{T+3}, v{T+3}, v{T+2}\n v_lshlrev_b32 v{T+3}, 4, v{T+3}")
    a("s_lshl_b32 s3, s7, 12\n s_lshl_b32 s14, s8, 11\n s_add_u32 s3, s3, s14")
    a(f"v_lshl_add_u32 v{T+3}, v{T}, 6, v{T+3}\n v_add_u32 v{vX[0,0]}, s3, v{T+3}")
    a(f"v_xor_b32 v{vX[1,0]}, 32, v{vX[0,0]}\n v_xor_b32 v{vX[0,1]}, 0x800, v{vX[0,0]}\n v_xor_b32 v{vX[1,1]}, 0x820, v{vX[0,0]}")
    a(f"v_bfe_u32 v{T+4}, v1, 4, 1\n v_mul_u32_u24 v{T+4}, 6176, v{T+4}")
    a(f"v_mul_u32_u24 v{T+5}, 1536, v{T+1}\n v_add_u32 v{T+4}, v{T+4}, v{T+5}")
    a(f"v_lshl_add_u32 v{T+4}, v{T+2}, 6, v{T+4}\n v_and_b32 v{T+5}, 3, v1\n v_lshl_add_u32 v{T+4}, v{T+5}, 3, v{T+4}")
    for uu in range(3):
        a(f"s_mul_i32 s3, s8, 3\n s_add_u32 s3, s3, {uu}\n s_and_b32 s14, s3, 1\n s_lshl_b32 s14, s14, 5\n s_lshr_b32 s3, s3, 1\n s_lshl_b32 s3, s3, 8")
        a("s_mul_i32 s15, s7, 3072\n s_add_u32 s3, s3, s15\n s_add_u32 s3, s3, 8192")
        a(f"v_xor_b32 v{T+5}, s14, v{T+4}\n v_add_u32 v{vW[0,uu]}, s3, v{T+5}")
        a("s_xor_b32 s15, s7, 1\n s_mul_i32 s15, s15, 3072\n s_mul_i32 s66, s7, 3072\n s_sub_u32 s3, s3, s66\n s_add_u32 s3, s3, s15")
        a(f"v_add_u32 v{vW[1,uu]}, s3, v{T+5}")
    for r in list(range(ACC,ACC+96))+list(range(SB,SB+20))+[SX,SXX]+CS: a(f"v_mov_b32 v{r}, 0")
    def reads(S,k,b):
        o=[f"ds_read_b128 {v(S,4)}, v{vX[k,0]} offset:{b*STG}", f"ds_read_b128 {v(S+4,4)}, v{vX[k,1]} offset:{b*STG}"]
        for uu in range(3):
            o.append(f"ds_read_b64_tr_b16 {v(S+8+4*uu,2)}, v{vW[k,uu]} offset:{b*STG}")
            o.append(f"ds_read_b64_tr_b16 {v(S+10+4*uu,2)}, v{vW[k,uu]} offset:{b*STG+768}")
        return o
    def mfmas(S):
        return [f"v_mfma_f32_32x32x16_bf16 {v(ACC+16*(3*sg+uu),16)}, {v(S+8+4*uu,4)}, {v(S+4*sg,4)}, {v(ACC+16*(3*sg+uu),16)}" for uu in range(3) for sg in range(2)]
    def xdots(S):
        o=[]
        for i in range(4):
            o.append(f"v_dot2c_f32_bf16 v{SX}, s64, v{S+i}"); o.append(f"v_dot2c_f32_bf16 v{SXX}, v{S+i}, v{S+i}")
        return o
    def wdots(S):
        return [f"v_dot2c_f32_bf16 v{CS[uu]}, s64, v{S+8+4*uu+i}" for i in range(4) for uu in range(3)]
    def stage(b, do_dma, vm):
        a(f"s_waitcnt vmcnt({vm}) lgkmcnt(0)\n s_barrier")
        for i in reads(SA,0,b): a(i)
        fill=xdots(SB)
        d=dma((b+3)&3) if do_dma else []
        mf=mfmas(SB); seq=[]
        di=0; fi=0
        for k,m in enumerate(mf):
            if di<len(d) and "m0" in d[di]: seq.append(d[di]); di+=1
            seq.append(m)
            if di<len(d) and "buffer" in d[di]: seq.append(d[di]); di+=1
            for _ in range(2):
                if fi<len(fill): seq.append(fill[fi]); fi+=1
        seq+=d[di:]+fill[fi:]
        for i in seq: a(i)
        a("s_waitcnt lgkmcnt(0)")
        for i in reads(SB,1,b): a(i)
        for i in interleave(mfmas(SA), xdots(SA)+wdots(SA), None): a(i)
    a("s_mov_b32 s13, 3")
    a.label("L_g1loop")
    for b in range(4): stage(b, True, 10)
    a("s_sub_u32 s13, s13, 1\n s_cmp_lg_u32 s13, 0\n s_cbranch_scc1 L_g1loop")
    stage(0, True, 10); stage(1, False, 10); stage(2, False, 5); stage(3, False, 0)
    a("s_waitcnt lgkmcnt(0)")
    for i in interleave(mfmas(SB), xdots(SB), None): a(i)
    a("s_nop 3")
    vals=[SX,SXX]+CS
    for i,r in enumerate(vals): a(f"v_mov_b32 v{T+i}, v{r}")
    a("s_nop 1")
    for i,r in enumerate(vals): a(f"v_permlane32_swap_b32 v{r}, v{T+i}")
    a("s_nop 1")
    for i,r in enumerate(vals): a(f"v_add_f32 v{r}, v{r}, v{T+i}")
    a(f"v_and_b32 v{T}, 31, v1\n s_lshl_b32 s3, s7, 9\n s_lshl_b32 s14, s8, 8\n s_add_u32 s3, s3, s14")
    a(f"v_lshlrev_b32 v{T+1}, 3, v{T}\n v_add_u32 v{T+1}, s3, v{T+1}")
    a("s_mul_i32 s3, s7, 768\n s_mul_i32 s14, s8, 384\n s_add_u32 s3, s3, s14\n s_add_u32 s3, s3, 1024")
    a(f"v_lshlrev_b32 v{T+2}, 2, v{T}\n v_add_u32 v{T+2}, s3, v{T+2}")
    a(f"ds_write_b64 v{T+1}, v[{SX}:{SXX}]")
    for uu in range(3): a(f"ds_write_b32 v{T+2}, v{CS[uu]} offset:{128*uu}")
    a(f"v_xor_b32 v{T+1}, 0x100, v{T+1}")
    a(f"v_lshrrev_b32 v15, 5, v1\n v_lshlrev_b32 v15, 4, v15\n s_add_u32 s14, s14, 1024\n v_add_u32 v15, s14, v15")
    a("s_waitcnt lgkmcnt(0)\n s_barrier")
    a(f"ds_read_b64 v[{T+4}:{T+5}], v{T+1}")
    C0=160; C1=176
    def csreads(uu):
        for q in range(4):
            a(f"ds_read_b128 {v(C0+4*q,4)}, v15 offset:{128*uu+32*q}")
            a(f"ds_read_b128 {v(C1+4*q,4)}, v15 offset:{768+128*uu+32*q}")
    csreads(0)
    NM=[2,8]; RS2=[4,10]; RSN=[6,12]
    a("s_waitcnt lgkmcnt(8)")
    for sg,(sx,sxx) in enumerate([(SX,SXX),(T+4,T+5)]):
        t=T+8
        a(f"v_mul_f32 v{t}, {f32(1/512)}, v{sx}\n v_mul_f32 v{t+1}, {f32(1/512)}, v{sxx}")
        a(f"v_fma_f32 v{t+1}, -v{t}, v{t}, v{t+1}\n v_max_f32 v{t+1}, 0, v{t+1}")
        bf16round(a,t,t); bf16round(a,t+1,t+1)
        a(f"v_add_f32 v{t+1}, {f32(1e-5)}, v{t+1}"); bf16round(a,t+1,t+1)
        a(f"v_sqrt_f32 v{t+1}, v{t+1}\n s_nop 0"); bf16round(a,t+1,t+1)
        a(f"v_rcp_f32 v{t+1}, v{t+1}\n v_sub_f32 v{NM[sg]}, 0, v{t}")
        a(f"v_mul_f32 v{RS2[sg]}, v{t+1}, v{t+1}\n v_mul_f32 v{RSN[sg]}, {f32(-LOG2E)}, v{t+1}")
    srd(a,56,P_WS,64*86*1024, WS_HF if WS_HF else None)
    a("s_lshl_b32 s3, s4, 2\n s_lshl_b32 s14, s7, 1\n s_add_u32 s3, s3, s14")
    a("s_mul_i32 s66, s5, 6\n s_mul_i32 s67, s8, 3\n s_add_u32 s66, s66, s67")
    a("s_add_u32 s14, s3, s8\n s_mul_i32 s14, s14, 86\n s_add_u32 s14, s14, s66\n s_lshl_b32 s14, s14, 10")
    a("s_xor_b32 s15, s8, 1\n s_add_u32 s15, s3, s15\n s_mul_i32 s15, s15, 86\n s_add_u32 s15, s15, s66\n s_lshl_b32 s15, s15, 10")
    a(f"v_lshlrev_b32 v14, 4, v1")
    for uu in range(3):
        a("s_waitcnt lgkmcnt(0)")
        for q in range(8): a(f"v_pk_add_f32 {v(T+16+2*q,2)}, {v(C0+2*q,2)}, {v(C1+2*q,2)}")
        if uu<2: csreads(uu+1)
        CSV=T+16
        a(f"s_add_u32 s3, s66, {uu}\n s_cmp_ge_u32 s3, 86\n s_cbranch_scc1 L_g1skip{uu}")
        for sg in range(2):
            A=ACC+16*(3*sg+uu)
            bc=lambda r: f"v[{r}:{r+1}]"
            for q in range(8): a(f"v_pk_fma_f32 {v(A+2*q,2)}, {v(CSV+2*q,2)}, {bc(NM[sg])}, {v(A+2*q,2)} op_sel_hi:[1,0,1]")
            E=T
            for q in range(4): a(f"v_pk_mul_f32 {v(E+2*q,2)}, {v(A+2*q,2)}, {bc(RSN[sg])} op_sel_hi:[1,0]")
            for q in range(4): a(f"v_pk_mul_f32 {v(A+2*q,2)}, {v(A+2*q,2)}, {v(A+8+2*q,2)}")
            for q in range(8): a(f"v_exp_f32 v{E+q}, v{E+q}")
            for q in range(4): a(f"v_pk_mul_f32 {v(A+2*q,2)}, {v(A+2*q,2)}, {bc(RS2[sg])} op_sel_hi:[1,0]")
            for q in range(4): a(f"v_pk_add_f32 {v(E+2*q,2)}, {v(E+2*q,2)}, 1.0 op_sel_hi:[1,0]")
            for q in range(8): a(f"v_rcp_f32 v{E+q}, v{E+q}")
            a("s_nop 0")
            for q in range(4): a(f"v_pk_mul_f32 {v(A+2*q,2)}, {v(A+2*q,2)}, {v(E+2*q,2)}")
            for q in range(4): a(f"v_cvt_pk_bf16_f32 v{A+8+q}, v{A+2*q}, v{A+2*q+1}")
            a(f"buffer_store_dwordx4 {v(A+8,4)}, v14, s[56:59], s{14+sg} offen offset:{1024*uu}")
        a.label(f"L_g1skip{uu}")
    a.label("L_end1")
    a("s_endpgm")

def kernel_header(a, name):
    a.raw(f".globl {name}\n.p2align 8\n.type {name},@function\n{name}:")
def kernel_desc(a, name, vg=256, sg=96):
    a.raw(f""".amdhsa_kernel {name}
  .amdhsa_next_free_vgpr {vg}
  .amdhsa_next_free_sgpr {sg}
  .amdhsa_accum_offset {(vg+3)//4*4}
  .amdhsa_group_segment_fixed_size 0
  .amdhsa_kernarg_size 128
  .amdhsa_user_sgpr_count 2
  .amdhsa_user_sgpr_kernarg_segment_ptr 1
  .amdhsa_system_sgpr_workgroup_id_x 1
.end_amdhsa_kernel""")

def build(opts):
    import gen2
    a=Asm()
    hdr=open("cdna_kernels/"+NAME+".s.ref").read().split("\n")
    for ln in hdr:
        if ln.startswith("; @launch") or ln.startswith("; Override") or ln.startswith("; grid=ceil"): continue
        if not ln.startswith(";"): break
        a.raw(ln)
    for l in opts["launches"]: a.raw(l)
    a.raw('.amdgcn_target "amdgcn-amd-amdhsa--gfx950"\n.text')
    kernel_header(a,"k1_kernel")
    load_ptrs(a)
    a("s_cmp_ge_u32 s2, 256\n s_cbranch_scc1 L_prep")
    gemm1(a)
    a.label("L_prep")
    gen2.prep(a)
    kernel_header(a,"k2_kernel")
    load_ptrs(a)
    gen2.k2(a, opts)
    a.raw('.section .rodata,"a"\n.p2align 6')
    kernel_desc(a,"k1_kernel", 200)
    a.raw(".p2align 6")
    kernel_desc(a,"k2_kernel", 200)
    return a.text()

if __name__=="__main__":
    opts={"launches":["; @launch kernel=k1_kernel grid=(512,1,1) block=(256,1,1) lds=81920",
                      "; @launch kernel=k2_kernel grid=(512,1,1) block=(256,1,1) lds=65536"]}
    open(sys.argv[1] if len(sys.argv)>1 else "cdna_kernels/"+NAME+".s","w").write(build(opts))
```
